```python
import torch

def _softmax(x, axis=-1):
    return torch.softmax(x, dim=axis)
def _gelu(x):
    return torch.nn.functional.gelu(x, approximate="tanh")
def _silu(x):
    return torch.nn.functional.silu(x)
def _sigmoid(x):
    return torch.sigmoid(x)
def _layernorm(x, axis=-1, eps=1e-5):
    m = x.mean(dim=axis, keepdim=True)
    v = x.var(dim=axis, keepdim=True, unbiased=False)
    return (x - m) / torch.sqrt(v + eps)
def _scatter_add(tgt, idx, src, axis=0):
    return tgt.clone().index_add_(axis, idx, src)
def _segment_sum(src, seg, n):
    out = torch.zeros((n,) + src.shape[1:], dtype=src.dtype)
    return out.index_add_(0, seg, src)
def _pad(x, pw):
    flat = tuple(v for pair in reversed(pw) for v in pair)
    return torch.nn.functional.pad(x, flat)

kernel_name = 'standalone__low_rank_proj_linformer__sampling'

def setup_inputs():

    _w = (lambda a: (lambda t: t.to(torch.bfloat16) if t.is_floating_point() else t)(torch.as_tensor(a)))
    B, H, Sq, Skv, Dh, R = 8, 32, 8, 2048, 128, 8
    return {
        "q": _w((lambda *s: torch.randn(*s, dtype=torch.bfloat16) * 0.8)(B, H, Sq, Dh)),
        "k": _w((lambda *s: torch.randn(*s, dtype=torch.bfloat16) * 0.8)(B, H, Skv, Dh)),
        "v": _w((lambda *s: torch.randn(*s, dtype=torch.bfloat16) * 0.05)(B, H, Skv, Dh)),
        "e_proj": _w((lambda *s: torch.randn(*s, dtype=torch.bfloat16) * 0.8)(R, Skv) * (Skv ** -0.5)),
        "f_proj": _w((lambda *s: torch.randn(*s, dtype=torch.bfloat16) * 0.05)(R, Skv) * (Skv ** -0.5)),
    }

def reference(q, k, v, e_proj, f_proj):
    B, H, Sq, Dh = q.shape
    kp = torch.einsum("rn,bhnd->bhrd", e_proj, k)
    vp = torch.einsum("rn,bhnd->bhrd", f_proj, v)
    scores = torch.einsum("bhqd,bhrd->bhqr", q, kp) * (Dh ** -0.5)
    p = _softmax(scores, axis=-1)
    o = torch.einsum("bhqr,bhrd->bhqd", p, vp)
    return o
```

```python
import argparse, sys

NAME = "standalone__low_rank_proj_linformer__sampling_kernel"
HEADER = open("standalone__low_rank_proj_linformer__sampling.s.ref").read().split("; Override launch")[0]


class Asm:
    def __init__(self):
        self.lines = []
        self.nv = 0

    def __call__(self, s=""):
        for ln in s.split("\n"):
            self.lines.append("    " + ln.strip() if ln.strip() and not ln.strip().endswith(":") else ln.strip())

    def valloc(self, n=1, align=1):
        self.nv = (self.nv + align - 1) // align * align
        r = self.nv
        self.nv += n
        return r

    def text(self):
        return "\n".join(self.lines)


def vr(b, n=1):
    return f"v{b}" if n == 1 else f"v[{b}:{b+n-1}]"


def wrap(a, W, lds, nsgpr=64):
    nv = max(a.nv, 8)
    acc = (nv + 3) // 4 * 4
    return (HEADER +
            f"; @launch grid=(256,1,1) block=({W*64},1,1) lds={lds}\n"
            '.amdgcn_target "amdgcn-amd-amdhsa--gfx950"\n.text\n'
            f".globl {NAME}\n.p2align 8\n.type {NAME},@function\n{NAME}:\n"
            + a.text() + "\n"
            '.section .rodata,"a"\n.p2align 6\n'
            f".amdhsa_kernel {NAME}\n"
            f"  .amdhsa_next_free_vgpr {nv}\n"
            f"  .amdhsa_next_free_sgpr {nsgpr}\n"
            f"  .amdhsa_accum_offset {acc}\n"
            "  .amdhsa_group_segment_fixed_size 0\n"
            "  .amdhsa_kernarg_size 64\n"
            "  .amdhsa_user_sgpr_count 2\n"
            "  .amdhsa_user_sgpr_kernarg_segment_ptr 1\n"
            "  .amdhsa_system_sgpr_workgroup_id_x 1\n"
            "  .amdhsa_float_denorm_mode_32 3\n"
            ".end_amdhsa_kernel\n")


S_Q, S_K, S_V, S_E, S_F, S_O = 4, 6, 8, 10, 12, 14
SRD_D, SRD_E, SRD_Q, SRD_O = 16, 20, 24, 28
S_W, S_OFFD, S_OFFE, S_IT, S_SELLO, S_SELHI, S_T0, S_T1, S_VLO, S_VHI = 3, 32, 33, 34, 35, 36, 37, 38, 40, 41
S_SCALE, S_LOG2E, S_EXEC = 42, 43, 44


def emit_P(a, W, acc, scr, vq, vKR, vlane, PBASE, qpairs):
    H = W // 2
    nb = len(scr) // (4 * H)
    def rd(t):
        b = scr[(t % nb) * 4 * H]
        for i in range(H):
            a(f"ds_read_b128 {vr(b+4*i,4)}, {vr(vKR)} offset:{i*4096+t*512}")
    for t in range(min(nb, 8)):
        rd(t)
    for t in range(8):
        left = min(nb, 8 - t) - 1
        a(f"s_waitcnt lgkmcnt({min(15, left*H)})")
        b = scr[(t % nb) * 4 * H]
        if H == 1:
            for j in range(4):
                a(f"v_mov_b32 {vr(acc+4*t+j)}, {vr(b+j)}")
        else:
            for j in (0, 2):
                a(f"v_pk_add_f32 {vr(acc+4*t+j,2)}, {vr(b+j,2)}, {vr(b+4+j,2)}")
            for i in range(2, H):
                for j in (0, 2):
                    a(f"v_pk_add_f32 {vr(acc+4*t+j,2)}, {vr(acc+4*t+j,2)}, {vr(b+4*i+j,2)}")
        if t + nb < 8:
            rd(t + nb)
    a("s_nop 1")
    for x in range(32):
        a(f"v_add_f32_dpp {vr(acc+x)}, {vr(acc+x)}, {vr(acc+x)} row_ror:8 row_mask:0xf bank_mask:0xf")
    kb = scr[0]
    for s in range(4):
        for p in range(4):
            x, y = qpairs(s, p)
            a(f"v_cvt_pk_bf16_f32 {vr(kb+4*s+p)}, {vr(acc+x)}, {vr(acc+y)}")
    sc = scr[16]
    a("s_nop 1")
    for s in range(4):
        c = "0" if s == 0 else vr(sc, 4)
        a(f"v_mfma_f32_16x16x32_bf16 {vr(sc,4)}, {vr(kb+4*s,4)}, {vr(vq+4*s,4)}, {c}")
    t0, t1, t2, t3 = scr[20], scr[21], scr[22], scr[23]
    a("s_nop 7")
    a(f"v_cvt_pk_bf16_f32 {vr(t0)}, {vr(sc)}, {vr(sc+1)}")
    a(f"v_cvt_pk_bf16_f32 {vr(t1)}, {vr(sc+2)}, {vr(sc+3)}")
    a(f"v_lshlrev_b32 {vr(sc)}, 16, {vr(t0)}")
    a(f"v_and_b32 {vr(sc+1)}, 0xffff0000, {vr(t0)}")
    a(f"v_lshlrev_b32 {vr(sc+2)}, 16, {vr(t1)}")
    a(f"v_and_b32 {vr(sc+3)}, 0xffff0000, {vr(t1)}")
    for j in range(4):
        a(f"v_mul_f32 {vr(sc+j)}, s{S_SCALE}, {vr(sc+j)}")
    a(f"v_cvt_pk_bf16_f32 {vr(t0)}, {vr(sc)}, {vr(sc+1)}")
    a(f"v_cvt_pk_bf16_f32 {vr(t1)}, {vr(sc+2)}, {vr(sc+3)}")
    a(f"v_lshlrev_b32 {vr(sc)}, 16, {vr(t0)}")
    a(f"v_and_b32 {vr(sc+1)}, 0xffff0000, {vr(t0)}")
    a(f"v_lshlrev_b32 {vr(sc+2)}, 16, {vr(t1)}")
    a(f"v_and_b32 {vr(sc+3)}, 0xffff0000, {vr(t1)}")
    a(f"v_max3_f32 {vr(t0)}, {vr(sc)}, {vr(sc+1)}, {vr(sc+2)}")
    a(f"v_max_f32 {vr(t0)}, {vr(t0)}, {vr(sc+3)}")
    a(f"v_mov_b32 {vr(t1)}, {vr(t0)}")
    a("s_nop 1")
    a(f"v_permlane16_swap_b32 {vr(t0)}, {vr(t1)}")
    a("s_nop 1")
    a(f"v_max_f32 {vr(t0)}, {vr(t0)}, {vr(t1)}")
    for j in range(4):
        a(f"v_sub_f32 {vr(sc+j)}, {vr(sc+j)}, {vr(t0)}")
    for j in range(4):
        a(f"v_mul_f32 {vr(sc+j)}, s{S_LOG2E}, {vr(sc+j)}")
    for j in range(4):
        a(f"v_exp_f32 {vr(sc+j)}, {vr(sc+j)}")
    a("s_nop 0")
    a(f"v_add_f32 {vr(t0)}, {vr(sc)}, {vr(sc+1)}")
    a(f"v_add_f32 {vr(t1)}, {vr(sc+2)}, {vr(sc+3)}")
    a(f"v_add_f32 {vr(t0)}, {vr(t0)}, {vr(t1)}")
    a(f"v_mov_b32 {vr(t1)}, {vr(t0)}")
    a("s_nop 1")
    a(f"v_permlane16_swap_b32 {vr(t0)}, {vr(t1)}")
    a("s_nop 1")
    a(f"v_add_f32 {vr(t0)}, {vr(t0)}, {vr(t1)}")
    a(f"v_rcp_f32 {vr(t0)}, {vr(t0)}")
    a("s_nop 0")
    for j in range(4):
        a(f"v_mul_f32 {vr(sc+j)}, {vr(sc+j)}, {vr(t0)}")
    a(f"v_cvt_pk_bf16_f32 {vr(t0)}, {vr(sc)}, {vr(sc+1)}")
    a(f"v_cvt_pk_bf16_f32 {vr(t1)}, {vr(sc+2)}, {vr(sc+3)}")
    a(f"v_cmp_gt_u32 vcc, 32, {vr(vlane)}")
    a(f"v_lshlrev_b32 {vr(t2)}, 2, {vr(vlane)}")
    a("s_nop 0")
    a(f"v_cndmask_b32 {vr(t0)}, {vr(t1)}, {vr(t0)}, vcc")
    a(f"ds_write_b32 {vr(t2)}, {vr(t0)} offset:{PBASE}")


def emit_Vtail(a, W, scr, vVR, vOut, vP4, PBASE, tile_lds_stride, pol_store=""):
    H = W // 2
    NT = max(1, 8 // W)
    pb = scr[0]
    rb = scr[4]
    a(f"ds_read_b32 {vr(pb)}, {vr(vP4)} offset:{PBASE}")
    for k in range(NT):
        for i in range(H):
            a(f"ds_read_b128 {vr(rb+4*(k*H+i),4)}, {vr(vVR[k])} offset:{i*4096}")
    a(f"v_mov_b32 {vr(pb+1)}, 0")
    a(f"v_mov_b32 {vr(pb+3)}, 0")
    for k in range(NT):
        b = rb + 4 * k * H
        n = H
        step = 1
        first = True
        while step < H:
            for i in range(0, H, 2 * step):
                if first:
                    a(f"s_waitcnt lgkmcnt({(NT-1-k)*H + H - i - 2})")
                for j in (0, 2):
                    a(f"v_pk_add_f32 {vr(b+4*i+j,2)}, {vr(b+4*i+j,2)}, {vr(b+4*(i+step)+j,2)}")
            first = False
            step *= 2
        a("s_nop 1")
        a(f"v_permlane32_swap_b32 {vr(b)}, {vr(b+2)}")
        a(f"v_permlane32_swap_b32 {vr(b+1)}, {vr(b+3)}")
        a("s_nop 1")
        a(f"v_pk_add_f32 {vr(b,2)}, {vr(b,2)}, {vr(b+2,2)}")
        a(f"v_cvt_pk_bf16_f32 {vr(pb+2)}, {vr(b)}, {vr(b+1)}")
        a("s_nop 1")
        a(f"v_mfma_f32_16x16x16_bf16 {vr(b,4)}, {vr(pb+2,2)}, {vr(pb,2)}, 0")
        a("s_nop 7")
        a(f"v_cvt_pk_bf16_f32 {vr(b)}, {vr(b)}, {vr(b+1)}")
        a(f"v_cvt_pk_bf16_f32 {vr(b+1)}, {vr(b+2)}, {vr(b+3)}")
        a(f"buffer_store_dwordx2 {vr(b,2)}, {vr(vOut)}, s[{SRD_O}:{SRD_O+3}], 0 offen offset:{k*32*W} {pol_store}")


def gen_A(W=8, D=4, pol="", interleave=True, polE=""):
    a = Asm()
    G = 64 // W
    assert G % D == 0
    PBASE, KBASE, VBASE = 0, 256, 256 + W * 4096
    lds = VBASE + W * 4096
    NT = max(1, 8 // W)
    v0 = a.valloc()
    vlane, vOffD, vOffE, vKW, vKR, vOut, vP4, vT = [a.valloc() for _ in range(8)]
    vVR = [a.valloc() for _ in range(NT)]
    vVW = [a.valloc() for _ in range(8)]
    acc = a.valloc(32, 4)
    tmp = a.valloc(8, 4)
    vq = a.valloc(16, 4)
    nscr = max(32, 4 + 4 * NT * (W // 2))
    scr0 = a.valloc(nscr, 4)
    scr = list(range(scr0, scr0 + nscr))
    dat = [a.valloc(32, 4) for _ in range(D)]
    ef = [a.valloc(4, 4) for _ in range(D)]
    gstep = W if interleave else 1

    def loads(s):
        for i in range(8):
            a(f"buffer_load_dwordx4 {vr(dat[s]+4*i,4)}, {vr(vOffD)}, s[{SRD_D}:{SRD_D+3}], s{S_OFFD} offen offset:{i*256} {pol}")
        a(f"buffer_load_dwordx4 {vr(ef[s],4)}, {vr(vOffE)}, s[{SRD_E}:{SRD_E+3}], s{S_OFFE} offen {polE}")
        a(f"s_add_u32 s{S_OFFD}, s{S_OFFD}, {gstep*8192}")
        a(f"s_add_u32 s{S_OFFE}, s{S_OFFE}, {gstep*64}")

    def perms(s, t):
        T = tmp + 4 * (t & 1)
        sel = S_SELHI if t & 1 else S_SELLO
        for p in range(4):
            a(f"v_perm_b32 {vr(T+p)}, {vr(dat[s]+4*(2*p+1)+(t>>1))}, {vr(dat[s]+4*(2*p)+(t>>1))}, s{sel}")

    def compute(s, isK):
        a(f"s_waitcnt vmcnt({9*(D-1)})")
        perms(s, 0)
        for t in range(8):
            if t < 7:
                perms(s, t + 1)
            else:
                a("s_nop 0")
            T = tmp + 4 * (t & 1)
            A, B = (vr(T, 4), vr(ef[s], 4)) if isK else (vr(ef[s], 4), vr(T, 4))
            a(f"v_mfma_f32_16x16x32_bf16 {vr(acc+4*t,4)}, {A}, {B}, {vr(acc+4*t,4)}")

    def start_offsets():
        if interleave:
            a(f"s_lshl_b32 s{S_OFFD}, s{S_W}, 13")
            a(f"s_lshl_b32 s{S_OFFE}, s{S_W}, 6")
        else:
            a(f"s_mul_i32 s{S_OFFD}, s{S_W}, {G*8192}")
            a(f"s_mul_i32 s{S_OFFE}, s{S_W}, {G*64}")

    a("s_cmp_ge_u32 s2, 256")
    a("s_cbranch_scc1 L_end")
    a("s_load_dwordx8 s[4:11], s[0:1], 0")
    a("s_load_dwordx4 s[12:15], s[0:1], 32")
    a(f"v_lshrrev_b32 {vr(vT)}, 6, v0")
    a(f"v_and_b32 {vr(vlane)}, 63, v0")
    a(f"v_readfirstlane_b32 s{S_W}, {vr(vT)}")
    a(f"v_lshrrev_b32 {vr(vT)}, 4, {vr(vlane)}")
    a(f"v_and_b32 {vr(vOffD)}, 15, v0")
    a(f"v_lshlrev_b32 {vr(vOffD)}, 4, {vr(vOffD)}")
    a(f"v_lshl_add_u32 {vr(vOffD)}, {vr(vT)}, 11, {vr(vOffD)}")
    a(f"v_and_b32 {vr(vOffE)}, 7, v0")
    a(f"v_lshlrev_b32 {vr(vOffE)}, 12, {vr(vOffE)}")
    a(f"v_lshl_add_u32 {vr(vOffE)}, {vr(vT)}, 4, {vr(vOffE)}")
    start_offsets()
    a(f"s_lshl_b32 s{S_T0}, s2, 19")
    a(f"s_mov_b32 s{SRD_D+2}, 0x80000")
    a(f"s_mov_b32 s{SRD_D+3}, 0x20000")
    a(f"s_mov_b32 s{SRD_E+2}, 0x8000")
    a(f"s_mov_b32 s{SRD_E+3}, 0x20000")
    a("s_waitcnt lgkmcnt(0)")
    a(f"s_add_u32 s{SRD_D}, s{S_K}, s{S_T0}")
    a(f"s_addc_u32 s{SRD_D+1}, s{S_K+1}, 0")
    a(f"s_mov_b32 s{SRD_E}, s{S_E}")
    a(f"s_mov_b32 s{SRD_E+1}, s{S_E+1}")
    loads(0)
    a(f"s_add_u32 s{S_VLO}, s{S_V}, s{S_T0}")
    a(f"s_addc_u32 s{S_VHI}, s{S_V+1}, 0")
    a(f"s_lshl_b32 s{S_T1}, s2, 11")
    a(f"s_add_u32 s{SRD_Q}, s{S_Q}, s{S_T1}")
    a(f"s_addc_u32 s{SRD_Q+1}, s{S_Q+1}, 0")
    a(f"s_mov_b32 s{SRD_Q+2}, 0x800")
    a(f"s_mov_b32 s{SRD_Q+3}, 0x20000")
    a(f"s_add_u32 s{SRD_O}, s{S_O}, s{S_T1}")
    a(f"s_addc_u32 s{SRD_O+1}, s{S_O+1}, 0")
    a(f"s_mov_b32 s{SRD_O+2}, 0x800")
    a(f"s_mov_b32 s{SRD_O+3}, 0x20000")
    a(f"v_and_b32 {vr(vP4)}, 7, v0")
    a(f"v_lshlrev_b32 {vr(vP4)}, 8, {vr(vP4)}")
    a(f"v_lshl_add_u32 {vr(vP4)}, {vr(vT)}, 6, {vr(vP4)}")
    a(f"s_cmp_lg_u32 s{S_W}, 0")
    a("s_cbranch_scc1 L_noq")
    for s in range(4):
        a(f"buffer_load_dwordx4 {vr(vq+4*s,4)}, {vr(vP4)}, s[{SRD_Q}:{SRD_Q+3}], 0 offen offset:{s*16}")
    a("L_noq:")
    for s in range(1, D):
        loads(s)
    a(f"s_mov_b32 s{S_SELLO}, 0x05040100")
    a(f"s_mov_b32 s{S_SELHI}, 0x07060302")
    a(f"s_mov_b32 s{S_SCALE}, 0x3db504f3")
    a(f"s_mov_b32 s{S_LOG2E}, 0x3fb8aa3b")
    for x in range(32):
        a(f"v_mov_b32 {vr(acc+x)}, 0")
    a(f"v_and_b32 {vr(vKR)}, 7, v0")
    a(f"v_lshl_add_u32 {vr(vKR)}, {vr(vT)}, 3, {vr(vKR)}")
    a(f"v_lshlrev_b32 {vr(vKR)}, 4, {vr(vKR)}")
    a(f"v_add_u32 {vr(vKR)}, {KBASE}, {vr(vKR)}")
    a(f"s_lshl_b32 s{S_T0}, s{S_W}, 12")
    a(f"v_add_u32 {vr(vKW)}, s{S_T0}, {vr(vKR)}")
    a(f"v_bfe_u32 {vr(vOut)}, v0, 3, 1")
    a(f"v_mul_u32_u24 {vr(vOut)}, {(W//2)*4096}, {vr(vOut)}")
    a(f"v_add_u32 {vr(vKR)}, {vr(vKR)}, {vr(vOut)}")
    a(f"v_and_b32 {vr(vOut)}, 1, {vr(vT)}")
    a(f"v_lshlrev_b32 {vr(vOut)}, 8, {vr(vOut)}")
    a(f"s_add_u32 s{S_T1}, s{S_T0}, {VBASE}")
    a(f"v_add_u32 {vr(vP4)}, s{S_T1}, {vr(vOut)}")
    for t in range(8):
        a(f"v_add_u32 {vr(vVW[t])}, {2*t}, v0")
        a(f"v_and_b32 {vr(vVW[t])}, 15, {vr(vVW[t])}")
        a(f"v_lshl_add_u32 {vr(vVW[t])}, {vr(vVW[t])}, 4, {vr(vP4)}")
    a(f"v_lshrrev_b32 {vr(vP4)}, 1, {vr(vT)}")
    a(f"v_mul_u32_u24 {vr(vP4)}, {(W//2)*4096}, {vr(vP4)}")
    a(f"v_add3_u32 {vr(vP4)}, {vr(vP4)}, {vr(vOut)}, {vr(vOut)}")
    a(f"v_sub_u32 {vr(vP4)}, {vr(vP4)}, {vr(vOut)}")
    a(f"v_and_b32 {vr(vOut)}, 7, v0")
    a(f"v_lshl_add_u32 {vr(vP4)}, {vr(vOut)}, 9, {vr(vP4)}")
    a(f"v_add_u32 {vr(vP4)}, {VBASE}, {vr(vP4)}")
    a(f"v_lshlrev_b32 {vr(vOut)}, 1, {vr(vOut)}")
    a(f"v_bfe_u32 {vr(tmp)}, v0, 3, 1")
    a(f"v_add_u32 {vr(vOut)}, {vr(vOut)}, {vr(tmp)}")
    a(f"s_lshl_b32 s{S_T1}, s{S_W}, 1")
    for k in range(NT):
        a(f"v_add_u32 {vr(tmp)}, s{S_T1}, {vr(vOut)}")
        if k:
            a(f"v_add_u32 {vr(tmp)}, {2*k*W}, {vr(tmp)}")
        a(f"v_and_b32 {vr(tmp)}, 15, {vr(tmp)}")
        a(f"v_lshl_add_u32 {vr(vVR[k])}, {vr(tmp)}, 4, {vr(vP4)}")
    a(f"v_and_b32 {vr(vOut)}, 15, v0")
    a(f"v_lshlrev_b32 {vr(vOut)}, 8, {vr(vOut)}")
    a(f"v_lshl_add_u32 {vr(vOut)}, {vr(vT)}, 3, {vr(vOut)}")
    a(f"s_lshl_b32 s{S_T1}, s{S_W}, 5")
    a(f"v_add_u32 {vr(vOut)}, s{S_T1}, {vr(vOut)}")
    a(f"v_lshlrev_b32 {vr(vP4)}, 2, {vr(vlane)}")

    a(f"s_mov_b32 s{S_IT}, 0")
    a("L_k:")
    a(f"s_cmp_lg_u32 s{S_IT}, {G-D}")
    a("s_cbranch_scc1 L_k_go")
    a(f"s_mov_b32 s{SRD_D}, s{S_VLO}")
    a(f"s_mov_b32 s{SRD_D+1}, s{S_VHI}")
    a(f"s_mov_b32 s{SRD_E}, s{S_F}")
    a(f"s_mov_b32 s{SRD_E+1}, s{S_F+1}")
    start_offsets()
    a("L_k_go:")
    for s in range(D):
        compute(s, True)
        loads(s)
    a(f"s_add_u32 s{S_IT}, s{S_IT}, {D}")
    a(f"s_cmp_lt_u32 s{S_IT}, {G}")
    a("s_cbranch_scc1 L_k")
    a(f"s_mov_b32 exec_lo, 0x00ff00ff")
    a(f"s_mov_b32 exec_hi, 0x00ff00ff")
    for t in range(8):
        a(f"ds_write_b128 {vr(vKW)}, {vr(acc+4*t,4)} offset:{t*512}")
    a("s_mov_b64 exec, -1")
    a("s_waitcnt lgkmcnt(0)")
    a("s_barrier")
    a(f"s_cmp_lg_u32 s{S_W}, 0")
    a("s_cbranch_scc1 L_nop")
    emit_P(a, W, acc, scr, vq, vKR, vlane, PBASE, lambda s, p: (4 * (2 * p) + s, 4 * (2 * p + 1) + s))
    a("L_nop:")
    for x in range(32):
        a(f"v_mov_b32 {vr(acc+x)}, 0")
    a(f"s_mov_b32 s{S_IT}, 0")
    a("L_v:")
    a(f"s_cmp_lg_u32 s{S_IT}, {G-D}")
    a("s_cbranch_scc1 L_v_go")
    a(f"s_mov_b32 s{SRD_D+2}, 0")
    a(f"s_mov_b32 s{SRD_E+2}, 0")
    a("L_v_go:")
    for s in range(D):
        compute(s, False)
        loads(s)
    a(f"s_add_u32 s{S_IT}, s{S_IT}, {D}")
    a(f"s_cmp_lt_u32 s{S_IT}, {G}")
    a("s_cbranch_scc1 L_v")
    a("s_mov_b32 exec_hi, 0")
    for t in range(8):
        a(f"ds_write_b128 {vr(vVW[t])}, {vr(acc+4*t,4)} offset:{t*512}")
    a("s_mov_b64 exec, -1")
    a("s_waitcnt lgkmcnt(0)")
    a("s_barrier")
    if W > 8:
        a(f"s_cmp_ge_u32 s{S_W}, 8")
        a("s_cbranch_scc1 L_end")
    emit_Vtail(a, W, scr, vVR, vOut, vP4, PBASE, 0)
    a("L_end:")
    a("s_endpgm")
    return wrap(a, W, lds)


if __name__ == "__main__":
    ap = argparse.ArgumentParser()
    ap.add_argument("--mode", default="A")
    ap.add_argument("-W", type=int, default=8)
    ap.add_argument("-D", type=int, default=4)
    ap.add_argument("--pol", default="")
    ap.add_argument("--polE", default="")
    ap.add_argument("--blocked", action="store_true")
    ap.add_argument("-o", default="-")
    x = ap.parse_args()
    s = gen_A(x.W, x.D, x.pol, not x.blocked, x.polE)
    if x.o == "-":
        sys.stdout.write(s)
    else:
        open(x.o, "w").write(s)
```

```python
import argparse, sys

NAME = "standalone__low_rank_proj_linformer__sampling_kernel"
HEADER = open("standalone__low_rank_proj_linformer__sampling.s.ref").read().split("; Override launch")[0]


class Asm:
    def __init__(self, diag=False):
        self.lines = []
        self.nv = 0
        self.diag = diag
        self.nst = 0

    def stamp(self, k):
        if self.diag:
            self(f"s_memrealtime s[{64+2*k}:{65+2*k}]")
            self.nst = max(self.nst, k + 1)

    def stamp_out(self, W, vt):
        if not self.diag:
            return
        if self.diag == 2:
            self("s_load_dwordx2 s[80:81], s[0:1], 48")
            self("s_waitcnt lgkmcnt(0)")
            self("s_mov_b32 s82, 256")
            self("s_mov_b32 s83, 0x20000")
            self("s_mov_b64 exec, 1")
            self(f"v_mov_b32 v{vt}, 0")
            for k in range(self.nst):
                self(f"v_mov_b32 v{vt+2}, s{64+2*k}")
                self(f"v_not_b32 v{vt+3}, s{64+2*k}")
                self(f"buffer_atomic_umax v{vt+3}, v{vt}, s[80:83], 0 offen offset:{8*k}")
                self(f"buffer_atomic_umax v{vt+2}, v{vt}, s[80:83], 0 offen offset:{8*k+4}")
            return
        self("s_load_dwordx2 s[80:81], s[0:1], 56")
        self("s_getreg_b32 s78, hwreg(HW_REG_HW_ID)")
        self("s_getreg_b32 s79, hwreg(HW_REG_XCC_ID)")
        self("s_waitcnt lgkmcnt(0)")
        self("s_mov_b32 s82, 0x1000000")
        self("s_mov_b32 s83, 0x20000")
        self(f"s_mul_i32 s84, s2, {W}")
        self(f"s_add_u32 s84, s84, s{S_W}")
        self("s_lshl_b32 s84, s84, 6")
        self("s_mov_b64 exec, 1")
        self(f"v_mov_b32 v{vt}, 0")
        for k in list(range(self.nst)) + [7]:
            self(f"v_mov_b32 v{vt+2}, s{64+2*k}")
            self(f"v_mov_b32 v{vt+3}, s{65+2*k}")
            self(f"buffer_store_dwordx2 v[{vt+2}:{vt+3}], v{vt}, s[80:83], s84 offen offset:{8*k}")

    def __call__(self, s=""):
        for ln in s.split("\n"):
            self.lines.append("    " + ln.strip() if ln.strip() and not ln.strip().endswith(":") else ln.strip())

    def valloc(self, n=1, align=1):
        self.nv = (self.nv + align - 1) // align * align
        r = self.nv
        self.nv += n
        return r

    def text(self):
        return "\n".join(self.lines)


def vr(b, n=1):
    return f"v{b}" if n == 1 else f"v[{b}:{b+n-1}]"


def wrap(a, W, lds, nsgpr=64):
    nv = max(a.nv, 8)
    acc = (nv + 3) // 4 * 4
    if a.diag:
        nsgpr = 96
    return (HEADER + (f"; nstamps={a.nst}\n" if a.diag else "") +
            f"; @launch grid=(256,1,1) block=({W*64},1,1) lds={lds}\n"
            '.amdgcn_target "amdgcn-amd-amdhsa--gfx950"\n.text\n'
            f".globl {NAME}\n.p2align 8\n.type {NAME},@function\n{NAME}:\n"
            + a.text() + "\n"
            '.section .rodata,"a"\n.p2align 6\n'
            f".amdhsa_kernel {NAME}\n"
            f"  .amdhsa_next_free_vgpr {nv}\n"
            f"  .amdhsa_next_free_sgpr {nsgpr}\n"
            f"  .amdhsa_accum_offset {acc}\n"
            "  .amdhsa_group_segment_fixed_size 0\n"
            "  .amdhsa_kernarg_size 64\n"
            "  .amdhsa_user_sgpr_count 2\n"
            "  .amdhsa_user_sgpr_kernarg_segment_ptr 1\n"
            "  .amdhsa_system_sgpr_workgroup_id_x 1\n"
            "  .amdhsa_float_denorm_mode_32 3\n"
            ".end_amdhsa_kernel\n")


S_Q, S_K, S_V, S_E, S_F, S_O = 4, 6, 8, 10, 12, 14
SRD_D, SRD_E, SRD_Q, SRD_O = 16, 20, 24, 28
S_W, S_OFFD, S_OFFE, S_IT, S_SELLO, S_SELHI, S_T0, S_T1, S_VLO, S_VHI = 3, 32, 33, 34, 35, 36, 37, 38, 40, 41
S_SCALE, S_LOG2E, S_EXEC = 42, 43, 44


def emit_P(a, W, acc, scr, vq, vKR, vlane, PBASE, qpairs):
    H = W // 2
    nb = len(scr) // (4 * H)
    def rd(t):
        b = scr[(t % nb) * 4 * H]
        for i in range(H):
            a(f"ds_read_b128 {vr(b+4*i,4)}, {vr(vKR)} offset:{i*4096+t*512}")
    for t in range(min(nb, 8)):
        rd(t)
    for t in range(8):
        left = min(nb, 8 - t) - 1
        a(f"s_waitcnt lgkmcnt({min(15, left*H)})")
        b = scr[(t % nb) * 4 * H]
        if H == 1:
            for j in range(4):
                a(f"v_mov_b32 {vr(acc+4*t+j)}, {vr(b+j)}")
        else:
            for j in (0, 2):
                a(f"v_pk_add_f32 {vr(acc+4*t+j,2)}, {vr(b+j,2)}, {vr(b+4+j,2)}")
            for i in range(2, H):
                for j in (0, 2):
                    a(f"v_pk_add_f32 {vr(acc+4*t+j,2)}, {vr(acc+4*t+j,2)}, {vr(b+4*i+j,2)}")
        if t + nb < 8:
            rd(t + nb)
    a("s_nop 1")
    for x in range(32):
        a(f"v_add_f32_dpp {vr(acc+x)}, {vr(acc+x)}, {vr(acc+x)} row_ror:8 row_mask:0xf bank_mask:0xf")
    kb = scr[0]
    for s in range(4):
        for p in range(4):
            x, y = qpairs(s, p)
            a(f"v_cvt_pk_bf16_f32 {vr(kb+4*s+p)}, {vr(acc+x)}, {vr(acc+y)}")
    sc = scr[16]
    a("s_nop 1")
    for s in range(4):
        c = "0" if s == 0 else vr(sc, 4)
        a(f"v_mfma_f32_16x16x32_bf16 {vr(sc,4)}, {vr(kb+4*s,4)}, {vr(vq+4*s,4)}, {c}")
    t0, t1, t2, t3 = scr[20], scr[21], scr[22], scr[23]
    a("s_nop 7")
    a(f"v_cvt_pk_bf16_f32 {vr(t0)}, {vr(sc)}, {vr(sc+1)}")
    a(f"v_cvt_pk_bf16_f32 {vr(t1)}, {vr(sc+2)}, {vr(sc+3)}")
    a(f"v_lshlrev_b32 {vr(sc)}, 16, {vr(t0)}")
    a(f"v_and_b32 {vr(sc+1)}, 0xffff0000, {vr(t0)}")
    a(f"v_lshlrev_b32 {vr(sc+2)}, 16, {vr(t1)}")
    a(f"v_and_b32 {vr(sc+3)}, 0xffff0000, {vr(t1)}")
    for j in range(4):
        a(f"v_mul_f32 {vr(sc+j)}, s{S_SCALE}, {vr(sc+j)}")
    a(f"v_cvt_pk_bf16_f32 {vr(t0)}, {vr(sc)}, {vr(sc+1)}")
    a(f"v_cvt_pk_bf16_f32 {vr(t1)}, {vr(sc+2)}, {vr(sc+3)}")
    a(f"v_lshlrev_b32 {vr(sc)}, 16, {vr(t0)}")
    a(f"v_and_b32 {vr(sc+1)}, 0xffff0000, {vr(t0)}")
    a(f"v_lshlrev_b32 {vr(sc+2)}, 16, {vr(t1)}")
    a(f"v_and_b32 {vr(sc+3)}, 0xffff0000, {vr(t1)}")
    a(f"v_max3_f32 {vr(t0)}, {vr(sc)}, {vr(sc+1)}, {vr(sc+2)}")
    a(f"v_max_f32 {vr(t0)}, {vr(t0)}, {vr(sc+3)}")
    a(f"v_mov_b32 {vr(t1)}, {vr(t0)}")
    a("s_nop 1")
    a(f"v_permlane16_swap_b32 {vr(t0)}, {vr(t1)}")
    a("s_nop 1")
    a(f"v_max_f32 {vr(t0)}, {vr(t0)}, {vr(t1)}")
    for j in range(4):
        a(f"v_sub_f32 {vr(sc+j)}, {vr(sc+j)}, {vr(t0)}")
    for j in range(4):
        a(f"v_mul_f32 {vr(sc+j)}, s{S_LOG2E}, {vr(sc+j)}")
    for j in range(4):
        a(f"v_exp_f32 {vr(sc+j)}, {vr(sc+j)}")
    a("s_nop 0")
    a(f"v_add_f32 {vr(t0)}, {vr(sc)}, {vr(sc+1)}")
    a(f"v_add_f32 {vr(t1)}, {vr(sc+2)}, {vr(sc+3)}")
    a(f"v_add_f32 {vr(t0)}, {vr(t0)}, {vr(t1)}")
    a(f"v_mov_b32 {vr(t1)}, {vr(t0)}")
    a("s_nop 1")
    a(f"v_permlane16_swap_b32 {vr(t0)}, {vr(t1)}")
    a("s_nop 1")
    a(f"v_add_f32 {vr(t0)}, {vr(t0)}, {vr(t1)}")
    a(f"v_rcp_f32 {vr(t0)}, {vr(t0)}")
    a("s_nop 0")
    for j in range(4):
        a(f"v_mul_f32 {vr(sc+j)}, {vr(sc+j)}, {vr(t0)}")
    a(f"v_cvt_pk_bf16_f32 {vr(t0)}, {vr(sc)}, {vr(sc+1)}")
    a(f"v_cvt_pk_bf16_f32 {vr(t1)}, {vr(sc+2)}, {vr(sc+3)}")
    a(f"v_cmp_gt_u32 vcc, 32, {vr(vlane)}")
    a(f"v_lshlrev_b32 {vr(t2)}, 2, {vr(vlane)}")
    a("s_nop 0")
    a(f"v_cndmask_b32 {vr(t0)}, {vr(t1)}, {vr(t0)}, vcc")
    a(f"ds_write_b32 {vr(t2)}, {vr(t0)} offset:{PBASE}")


def emit_Vtail(a, W, scr, vVR, vOut, vP4, PBASE, tile_lds_stride, pol_store=""):
    H = W // 2
    NT = max(1, 8 // W)
    pb = scr[0]
    rb = scr[4]
    a(f"ds_read_b32 {vr(pb)}, {vr(vP4)} offset:{PBASE}")
    for k in range(NT):
        for i in range(H):
            a(f"ds_read_b128 {vr(rb+4*(k*H+i),4)}, {vr(vVR[k])} offset:{i*4096}")
    a(f"v_mov_b32 {vr(pb+1)}, 0")
    a(f"v_mov_b32 {vr(pb+3)}, 0")
    for k in range(NT):
        b = rb + 4 * k * H
        n = H
        step = 1
        first = True
        if H == 1:
            a(f"s_waitcnt lgkmcnt({NT-1-k})")
        while step < H:
            for i in range(0, H, 2 * step):
                if first:
                    a(f"s_waitcnt lgkmcnt({(NT-1-k)*H + H - i - 2})")
                for j in (0, 2):
                    a(f"v_pk_add_f32 {vr(b+4*i+j,2)}, {vr(b+4*i+j,2)}, {vr(b+4*(i+step)+j,2)}")
            first = False
            step *= 2
        a("s_nop 1")
        a(f"v_permlane32_swap_b32 {vr(b)}, {vr(b+2)}")
        a(f"v_permlane32_swap_b32 {vr(b+1)}, {vr(b+3)}")
        a("s_nop 1")
        a(f"v_pk_add_f32 {vr(b,2)}, {vr(b,2)}, {vr(b+2,2)}")
        a(f"v_cvt_pk_bf16_f32 {vr(pb+2)}, {vr(b)}, {vr(b+1)}")
        a("s_nop 1")
        a(f"v_mfma_f32_16x16x16_bf16 {vr(b,4)}, {vr(pb+2,2)}, {vr(pb,2)}, 0")
        a("s_nop 7")
        a(f"v_cvt_pk_bf16_f32 {vr(b)}, {vr(b)}, {vr(b+1)}")
        a(f"v_cvt_pk_bf16_f32 {vr(b+1)}, {vr(b+2)}, {vr(b+3)}")
        a(f"buffer_store_dwordx2 {vr(b,2)}, {vr(vOut)}, s[{SRD_O}:{SRD_O+3}], 0 offen offset:{k*32*W} {pol_store}")


def gen_A(W=8, D=4, pol="", interleave=True, polE="", diag=False, rot=0, rep=1):
    a = Asm(diag)
    G = 64 // W
    assert G % D == 0
    PBASE, KBASE, VBASE = 0, 256, 256 + W * 4096
    lds = VBASE + W * 4096
    NT = max(1, 8 // W)
    v0 = a.valloc()
    vlane, vOffD, vOffE, vKW, vKR, vOut, vP4, vT = [a.valloc() for _ in range(8)]
    vVR = [a.valloc() for _ in range(NT)]
    vVW = [a.valloc() for _ in range(8)]
    acc = a.valloc(32, 4)
    tmp = a.valloc(8, 4)
    vq = a.valloc(16, 4)
    nscr = max(32, 4 + 4 * NT * (W // 2))
    scr0 = a.valloc(nscr, 4)
    scr = list(range(scr0, scr0 + nscr))
    dat = [a.valloc(32, 4) for _ in range(D)]
    ef = [a.valloc(4, 4) for _ in range(D)]
    gstep = W if interleave else 1

    def loads(s):
        for i in range(8):
            a(f"buffer_load_dwordx4 {vr(dat[s]+4*i,4)}, {vr(vOffD)}, s[{SRD_D}:{SRD_D+3}], s{S_OFFD} offen offset:{i*256} {pol}")
        a(f"buffer_load_dwordx4 {vr(ef[s],4)}, {vr(vOffE)}, s[{SRD_E}:{SRD_E+3}], s{S_OFFE} offen {polE}")
        a(f"s_add_u32 s{S_OFFD}, s{S_OFFD}, {gstep*8192}")
        a(f"s_add_u32 s{S_OFFE}, s{S_OFFE}, {gstep*64}")

    def perms(s, t):
        T = tmp + 4 * (t & 1)
        sel = S_SELHI if t & 1 else S_SELLO
        for p in range(4):
            a(f"v_perm_b32 {vr(T+p)}, {vr(dat[s]+4*(2*p+1)+(t>>1))}, {vr(dat[s]+4*(2*p)+(t>>1))}, s{sel}")

    def compute(s, isK):
        a(f"s_waitcnt vmcnt({9*(D-1)})")
        perms(s, 0)
        for t in range(8):
            if t < 7:
                perms(s, t + 1)
            else:
                a("s_nop 0")
            T = tmp + 4 * (t & 1)
            A, B = (vr(T, 4), vr(ef[s], 4)) if isK else (vr(ef[s], 4), vr(T, 4))
            a(f"v_mfma_f32_16x16x32_bf16 {vr(acc+4*t,4)}, {A}, {B}, {vr(acc+4*t,4)}")

    def start_offsets():
        if interleave:
            a(f"s_lshl_b32 s{S_OFFD}, s{S_W}, 13")
            a(f"s_lshl_b32 s{S_OFFE}, s{S_W}, 6")
        else:
            a(f"s_mul_i32 s{S_OFFD}, s{S_W}, {G*8192}")
            a(f"s_mul_i32 s{S_OFFE}, s{S_W}, {G*64}")

    a("s_cmp_ge_u32 s2, 256")
    a("s_cbranch_scc1 L_end")
    a.stamp(0)
    if rep > 1:
        a("s_mov_b32 s60, 0")
        a("L_rep:")
    a("s_load_dwordx8 s[4:11], s[0:1], 0")
    a("s_load_dwordx4 s[12:15], s[0:1], 32")
    a(f"v_lshrrev_b32 {vr(vT)}, 6, v0")
    a(f"v_and_b32 {vr(vlane)}, 63, v0")
    a(f"v_readfirstlane_b32 s{S_W}, {vr(vT)}")
    a(f"v_lshrrev_b32 {vr(vT)}, 4, {vr(vlane)}")
    a(f"v_and_b32 {vr(vOffD)}, 15, v0")
    a(f"v_lshlrev_b32 {vr(vOffD)}, 4, {vr(vOffD)}")
    a(f"v_lshl_add_u32 {vr(vOffD)}, {vr(vT)}, 11, {vr(vOffD)}")
    a(f"v_and_b32 {vr(vOffE)}, 7, v0")
    a(f"v_lshlrev_b32 {vr(vOffE)}, 12, {vr(vOffE)}")
    a(f"v_lshl_add_u32 {vr(vOffE)}, {vr(vT)}, 4, {vr(vOffE)}")
    start_offsets()
    a(f"s_lshl_b32 s{S_T0}, s2, 19")
    a(f"s_mov_b32 s{SRD_D+2}, 0x80000")
    a(f"s_mov_b32 s{SRD_D+3}, 0x20000")
    a(f"s_mov_b32 s{SRD_E+2}, 0x8000")
    a(f"s_mov_b32 s{SRD_E+3}, 0x20000")
    a("s_waitcnt lgkmcnt(0)")
    a(f"s_add_u32 s{SRD_D}, s{S_K}, s{S_T0}")
    a(f"s_addc_u32 s{SRD_D+1}, s{S_K+1}, 0")
    a(f"s_mov_b32 s{SRD_E}, s{S_E}")
    a(f"s_mov_b32 s{SRD_E+1}, s{S_E+1}")
    loads(0)
    a(f"s_add_u32 s{S_VLO}, s{S_V}, s{S_T0}")
    a(f"s_addc_u32 s{S_VHI}, s{S_V+1}, 0")
    a(f"s_lshl_b32 s{S_T1}, s2, 11")
    a(f"s_add_u32 s{SRD_Q}, s{S_Q}, s{S_T1}")
    a(f"s_addc_u32 s{SRD_Q+1}, s{S_Q+1}, 0")
    a(f"s_mov_b32 s{SRD_Q+2}, 0x800")
    a(f"s_mov_b32 s{SRD_Q+3}, 0x20000")
    a(f"s_add_u32 s{SRD_O}, s{S_O}, s{S_T1}")
    a(f"s_addc_u32 s{SRD_O+1}, s{S_O+1}, 0")
    a(f"s_mov_b32 s{SRD_O+2}, 0x800")
    a(f"s_mov_b32 s{SRD_O+3}, 0x20000")
    a(f"v_and_b32 {vr(vP4)}, 7, v0")
    a(f"v_lshlrev_b32 {vr(vP4)}, 8, {vr(vP4)}")
    a(f"v_lshl_add_u32 {vr(vP4)}, {vr(vT)}, 6, {vr(vP4)}")
    a(f"s_cmp_lg_u32 s{S_W}, 0")
    a("s_cbranch_scc1 L_noq")
    for s in range(4):
        a(f"buffer_load_dwordx4 {vr(vq+4*s,4)}, {vr(vP4)}, s[{SRD_Q}:{SRD_Q+3}], 0 offen offset:{s*16}")
    a("L_noq:")
    for s in range(1, D):
        loads(s)
    a(f"s_mov_b32 s{S_SELLO}, 0x05040100")
    a(f"s_mov_b32 s{S_SELHI}, 0x07060302")
    a(f"s_mov_b32 s{S_SCALE}, 0x3db504f3")
    a(f"s_mov_b32 s{S_LOG2E}, 0x3fb8aa3b")
    for x in range(32):
        a(f"v_mov_b32 {vr(acc+x)}, 0")
    a(f"v_and_b32 {vr(vKR)}, 7, v0")
    a(f"v_lshl_add_u32 {vr(vKR)}, {vr(vT)}, 3, {vr(vKR)}")
    a(f"v_lshlrev_b32 {vr(vKR)}, 4, {vr(vKR)}")
    a(f"v_add_u32 {vr(vKR)}, {KBASE}, {vr(vKR)}")
    a(f"s_lshl_b32 s{S_T0}, s{S_W}, 12")
    a(f"v_add_u32 {vr(vKW)}, s{S_T0}, {vr(vKR)}")
    a(f"v_bfe_u32 {vr(vOut)}, v0, 3, 1")
    a(f"v_mul_u32_u24 {vr(vOut)}, {(W//2)*4096}, {vr(vOut)}")
    a(f"v_add_u32 {vr(vKR)}, {vr(vKR)}, {vr(vOut)}")
    a(f"v_and_b32 {vr(vOut)}, 1, {vr(vT)}")
    a(f"v_lshlrev_b32 {vr(vOut)}, 8, {vr(vOut)}")
    a(f"s_add_u32 s{S_T1}, s{S_T0}, {VBASE}")
    a(f"v_add_u32 {vr(vP4)}, s{S_T1}, {vr(vOut)}")
    for t in range(8):
        a(f"v_add_u32 {vr(vVW[t])}, {2*t}, v0")
        a(f"v_and_b32 {vr(vVW[t])}, 15, {vr(vVW[t])}")
        a(f"v_lshl_add_u32 {vr(vVW[t])}, {vr(vVW[t])}, 4, {vr(vP4)}")
    a(f"v_lshrrev_b32 {vr(vP4)}, 1, {vr(vT)}")
    a(f"v_mul_u32_u24 {vr(vP4)}, {(W//2)*4096}, {vr(vP4)}")
    a(f"v_add3_u32 {vr(vP4)}, {vr(vP4)}, {vr(vOut)}, {vr(vOut)}")
    a(f"v_sub_u32 {vr(vP4)}, {vr(vP4)}, {vr(vOut)}")
    a(f"v_and_b32 {vr(vOut)}, 7, v0")
    a(f"v_lshl_add_u32 {vr(vP4)}, {vr(vOut)}, 9, {vr(vP4)}")
    a(f"v_add_u32 {vr(vP4)}, {VBASE}, {vr(vP4)}")
    a(f"v_lshlrev_b32 {vr(vOut)}, 1, {vr(vOut)}")
    a(f"v_bfe_u32 {vr(tmp)}, v0, 3, 1")
    a(f"v_add_u32 {vr(vOut)}, {vr(vOut)}, {vr(tmp)}")
    a(f"s_lshl_b32 s{S_T1}, s{S_W}, 1")
    for k in range(NT):
        a(f"v_add_u32 {vr(tmp)}, s{S_T1}, {vr(vOut)}")
        if k:
            a(f"v_add_u32 {vr(tmp)}, {2*k*W}, {vr(tmp)}")
        a(f"v_and_b32 {vr(tmp)}, 15, {vr(tmp)}")
        a(f"v_lshl_add_u32 {vr(vVR[k])}, {vr(tmp)}, 4, {vr(vP4)}")
    a(f"v_and_b32 {vr(vOut)}, 15, v0")
    a(f"v_lshlrev_b32 {vr(vOut)}, 8, {vr(vOut)}")
    a(f"v_lshl_add_u32 {vr(vOut)}, {vr(vT)}, 3, {vr(vOut)}")
    a(f"s_lshl_b32 s{S_T1}, s{S_W}, 5")
    a(f"v_add_u32 {vr(vOut)}, s{S_T1}, {vr(vOut)}")
    a(f"v_lshlrev_b32 {vr(vP4)}, 2, {vr(vlane)}")

    a.stamp(1)
    if diag:
        a(f"s_waitcnt vmcnt({9*(D-1)})")
    a.stamp(2)
    a(f"s_mov_b32 s{S_IT}, 0")
    a("L_k:")
    a(f"s_cmp_lg_u32 s{S_IT}, {G-D}")
    a("s_cbranch_scc1 L_k_go")
    a(f"s_mov_b32 s{SRD_D}, s{S_VLO}")
    a(f"s_mov_b32 s{SRD_D+1}, s{S_VHI}")
    a(f"s_mov_b32 s{SRD_E}, s{S_F}")
    a(f"s_mov_b32 s{SRD_E+1}, s{S_F+1}")
    start_offsets()
    a("L_k_go:")
    for s in range(D):
        compute(s, True)
        loads(s)
    a(f"s_add_u32 s{S_IT}, s{S_IT}, {D}")
    a(f"s_cmp_lt_u32 s{S_IT}, {G}")
    a("s_cbranch_scc1 L_k")
    a.stamp(3)
    a(f"s_mov_b32 exec_lo, 0x00ff00ff")
    a(f"s_mov_b32 exec_hi, 0x00ff00ff")
    for t in range(8):
        a(f"ds_write_b128 {vr(vKW)}, {vr(acc+4*t,4)} offset:{t*512}")
    a("s_mov_b64 exec, -1")
    a("s_waitcnt lgkmcnt(0)")
    a("s_barrier")
    a(f"s_cmp_lg_u32 s{S_W}, 0")
    a("s_cbranch_scc1 L_nop")
    emit_P(a, W, acc, scr, vq, vKR, vlane, PBASE, lambda s, p: (4 * (2 * p) + s, 4 * (2 * p + 1) + s))
    a("L_nop:")
    for x in range(32):
        a(f"v_mov_b32 {vr(acc+x)}, 0")
    a(f"s_mov_b32 s{S_IT}, 0")
    a("L_v:")
    a(f"s_cmp_lg_u32 s{S_IT}, {G-D}")
    a("s_cbranch_scc1 L_v_go")
    a(f"s_mov_b32 s{SRD_D+2}, 0")
    a(f"s_mov_b32 s{SRD_E+2}, 0")
    a("L_v_go:")
    for s in range(D):
        compute(s, False)
        loads(s)
    a(f"s_add_u32 s{S_IT}, s{S_IT}, {D}")
    a(f"s_cmp_lt_u32 s{S_IT}, {G}")
    a("s_cbranch_scc1 L_v")
    a.stamp(4)
    a("s_mov_b32 exec_hi, 0")
    for t in range(8):
        a(f"ds_write_b128 {vr(vVW[t])}, {vr(acc+4*t,4)} offset:{t*512}")
    a("s_mov_b64 exec, -1")
    a("s_waitcnt lgkmcnt(0)")
    a("s_barrier")
    if W > 8:
        a(f"s_cmp_ge_u32 s{S_W}, 8")
        a("s_cbranch_scc1 L_end")
    a.stamp(5)
    emit_Vtail(a, W, scr, vVR, vOut, vP4, PBASE, 0)
    if rep > 1:
        a("s_waitcnt vmcnt(0) lgkmcnt(0)")
        a("s_barrier")
        a("s_add_u32 s60, s60, 1")
        a(f"s_cmp_lt_u32 s60, {rep}")
        a("s_cbranch_scc1 L_rep")
    a.stamp(6)
    a.stamp_out(W, tmp)
    a("L_end:")
    a("s_endpgm")
    return wrap(a, W, lds)


if __name__ == "__main__":
    ap = argparse.ArgumentParser()
    ap.add_argument("--mode", default="A")
    ap.add_argument("-W", type=int, default=8)
    ap.add_argument("-D", type=int, default=4)
    ap.add_argument("--pol", default="")
    ap.add_argument("--polE", default="")
    ap.add_argument("--blocked", action="store_true")
    ap.add_argument("--diag", type=int, default=0)
    ap.add_argument("--rot", type=int, default=0)
    ap.add_argument("--rep", type=int, default=1)
    ap.add_argument("-o", default="-")
    x = ap.parse_args()
    s = gen_A(x.W, x.D, x.pol, not x.blocked, x.polE, x.diag, x.rot, x.rep)
    if x.o == "-":
        sys.stdout.write(s)
    else:
        open(x.o, "w").write(s)
```

```python
import argparse, sys

NAME = "standalone__low_rank_proj_linformer__sampling_kernel"
HEADER = open("standalone__low_rank_proj_linformer__sampling.s.ref").read().split("; Override launch")[0]


class Asm:
    def __init__(self, diag=False):
        self.lines = []
        self.nv = 0
        self.diag = diag
        self.nst = 0

    def stamp(self, k):
        if self.diag:
            self(f"s_memrealtime s[{64+2*k}:{65+2*k}]")
            self.nst = max(self.nst, k + 1)

    def stamp_out(self, W, vt):
        if not self.diag:
            return
        if self.diag == 2:
            self("s_load_dwordx2 s[80:81], s[0:1], 48")
            self("s_waitcnt lgkmcnt(0)")
            self("s_mov_b32 s82, 256")
            self("s_mov_b32 s83, 0x20000")
            self("s_mov_b64 exec, 1")
            self(f"v_mov_b32 v{vt}, 0")
            for k in range(self.nst):
                self(f"v_mov_b32 v{vt+2}, s{64+2*k}")
                self(f"v_not_b32 v{vt+3}, s{64+2*k}")
                self(f"buffer_atomic_umax v{vt+3}, v{vt}, s[80:83], 0 offen offset:{8*k}")
                self(f"buffer_atomic_umax v{vt+2}, v{vt}, s[80:83], 0 offen offset:{8*k+4}")
            return
        self("s_load_dwordx2 s[80:81], s[0:1], 56")
        self("s_getreg_b32 s78, hwreg(HW_REG_HW_ID)")
        self("s_getreg_b32 s79, hwreg(HW_REG_XCC_ID)")
        self("s_waitcnt lgkmcnt(0)")
        self("s_mov_b32 s82, 0x1000000")
        self("s_mov_b32 s83, 0x20000")
        self(f"s_mul_i32 s84, s2, {W}")
        self(f"s_add_u32 s84, s84, s{S_W}")
        self("s_lshl_b32 s84, s84, 6")
        self("s_mov_b64 exec, 1")
        self(f"v_mov_b32 v{vt}, 0")
        for k in list(range(self.nst)) + [7]:
            self(f"v_mov_b32 v{vt+2}, s{64+2*k}")
            self(f"v_mov_b32 v{vt+3}, s{65+2*k}")
            self(f"buffer_store_dwordx2 v[{vt+2}:{vt+3}], v{vt}, s[80:83], s84 offen offset:{8*k}")

    def __call__(self, s=""):
        for ln in s.split("\n"):
            self.lines.append("    " + ln.strip() if ln.strip() and not ln.strip().endswith(":") else ln.strip())

    def valloc(self, n=1, align=1):
        self.nv = (self.nv + align - 1) // align * align
        r = self.nv
        self.nv += n
        return r

    def text(self):
        return "\n".join(self.lines)


def vr(b, n=1):
    return f"v{b}" if n == 1 else f"v[{b}:{b+n-1}]"


def wrap(a, W, lds, nsgpr=64):
    nv = max(a.nv, 8)
    acc = (nv + 3) // 4 * 4
    if a.diag:
        nsgpr = 96
    return (HEADER + (f"; nstamps={a.nst}\n" if a.diag else "") +
            f"; @launch grid=(256,1,1) block=({W*64},1,1) lds={lds}\n"
            '.amdgcn_target "amdgcn-amd-amdhsa--gfx950"\n.text\n'
            f".globl {NAME}\n.p2align 8\n.type {NAME},@function\n{NAME}:\n"
            + a.text() + "\n"
            '.section .rodata,"a"\n.p2align 6\n'
            f".amdhsa_kernel {NAME}\n"
            f"  .amdhsa_next_free_vgpr {nv}\n"
            f"  .amdhsa_next_free_sgpr {nsgpr}\n"
            f"  .amdhsa_accum_offset {acc}\n"
            "  .amdhsa_group_segment_fixed_size 0\n"
            "  .amdhsa_kernarg_size 64\n"
            "  .amdhsa_user_sgpr_count 2\n"
            "  .amdhsa_user_sgpr_kernarg_segment_ptr 1\n"
            "  .amdhsa_system_sgpr_workgroup_id_x 1\n"
            "  .amdhsa_float_denorm_mode_32 3\n"
            ".end_amdhsa_kernel\n")


S_Q, S_K, S_V, S_E, S_F, S_O = 4, 6, 8, 10, 12, 14
SRD_D, SRD_E, SRD_Q, SRD_O = 16, 20, 24, 28
S_W, S_OFFD, S_OFFE, S_IT, S_SELLO, S_SELHI, S_T0, S_T1, S_VLO, S_VHI = 3, 32, 33, 34, 35, 36, 37, 38, 40, 41
S_SCALE, S_LOG2E, S_EXEC = 42, 43, 44


def emit_P(a, W, acc, scr, vq, vKR, vlane, PBASE, qpairs):
    H = W // 2
    nb = len(scr) // (4 * H)
    def rd(t):
        b = scr[(t % nb) * 4 * H]
        for i in range(H):
            a(f"ds_read_b128 {vr(b+4*i,4)}, {vr(vKR)} offset:{i*4096+t*512}")
    for t in range(min(nb, 8)):
        rd(t)
    for t in range(8):
        left = min(nb, 8 - t) - 1
        a(f"s_waitcnt lgkmcnt({min(15, left*H)})")
        b = scr[(t % nb) * 4 * H]
        if H == 1:
            for j in range(4):
                a(f"v_mov_b32 {vr(acc+4*t+j)}, {vr(b+j)}")
        else:
            for j in (0, 2):
                a(f"v_pk_add_f32 {vr(acc+4*t+j,2)}, {vr(b+j,2)}, {vr(b+4+j,2)}")
            for i in range(2, H):
                for j in (0, 2):
                    a(f"v_pk_add_f32 {vr(acc+4*t+j,2)}, {vr(acc+4*t+j,2)}, {vr(b+4*i+j,2)}")
        if t + nb < 8:
            rd(t + nb)
    a("s_nop 1")
    for x in range(32):
        a(f"v_add_f32_dpp {vr(acc+x)}, {vr(acc+x)}, {vr(acc+x)} row_ror:8 row_mask:0xf bank_mask:0xf")
    kb = scr[0]
    for s in range(4):
        for p in range(4):
            x, y = qpairs(s, p)
            a(f"v_cvt_pk_bf16_f32 {vr(kb+4*s+p)}, {vr(acc+x)}, {vr(acc+y)}")
    sc = scr[16]
    a("s_nop 1")
    for s in range(4):
        c = "0" if s == 0 else vr(sc, 4)
        a(f"v_mfma_f32_16x16x32_bf16 {vr(sc,4)}, {vr(kb+4*s,4)}, {vr(vq+4*s,4)}, {c}")
    t0, t1, t2, t3 = scr[20], scr[21], scr[22], scr[23]
    a("s_nop 7")
    a(f"v_cvt_pk_bf16_f32 {vr(t0)}, {vr(sc)}, {vr(sc+1)}")
    a(f"v_cvt_pk_bf16_f32 {vr(t1)}, {vr(sc+2)}, {vr(sc+3)}")
    a(f"v_lshlrev_b32 {vr(sc)}, 16, {vr(t0)}")
    a(f"v_and_b32 {vr(sc+1)}, 0xffff0000, {vr(t0)}")
    a(f"v_lshlrev_b32 {vr(sc+2)}, 16, {vr(t1)}")
    a(f"v_and_b32 {vr(sc+3)}, 0xffff0000, {vr(t1)}")
    for j in range(4):
        a(f"v_mul_f32 {vr(sc+j)}, s{S_SCALE}, {vr(sc+j)}")
    a(f"v_cvt_pk_bf16_f32 {vr(t0)}, {vr(sc)}, {vr(sc+1)}")
    a(f"v_cvt_pk_bf16_f32 {vr(t1)}, {vr(sc+2)}, {vr(sc+3)}")
    a(f"v_lshlrev_b32 {vr(sc)}, 16, {vr(t0)}")
    a(f"v_and_b32 {vr(sc+1)}, 0xffff0000, {vr(t0)}")
    a(f"v_lshlrev_b32 {vr(sc+2)}, 16, {vr(t1)}")
    a(f"v_and_b32 {vr(sc+3)}, 0xffff0000, {vr(t1)}")
    a(f"v_max3_f32 {vr(t0)}, {vr(sc)}, {vr(sc+1)}, {vr(sc+2)}")
    a(f"v_max_f32 {vr(t0)}, {vr(t0)}, {vr(sc+3)}")
    a(f"v_mov_b32 {vr(t1)}, {vr(t0)}")
    a("s_nop 1")
    a(f"v_permlane16_swap_b32 {vr(t0)}, {vr(t1)}")
    a("s_nop 1")
    a(f"v_max_f32 {vr(t0)}, {vr(t0)}, {vr(t1)}")
    for j in range(4):
        a(f"v_sub_f32 {vr(sc+j)}, {vr(sc+j)}, {vr(t0)}")
    for j in range(4):
        a(f"v_mul_f32 {vr(sc+j)}, s{S_LOG2E}, {vr(sc+j)}")
    for j in range(4):
        a(f"v_exp_f32 {vr(sc+j)}, {vr(sc+j)}")
    a("s_nop 0")
    a(f"v_add_f32 {vr(t0)}, {vr(sc)}, {vr(sc+1)}")
    a(f"v_add_f32 {vr(t1)}, {vr(sc+2)}, {vr(sc+3)}")
    a(f"v_add_f32 {vr(t0)}, {vr(t0)}, {vr(t1)}")
    a(f"v_mov_b32 {vr(t1)}, {vr(t0)}")
    a("s_nop 1")
    a(f"v_permlane16_swap_b32 {vr(t0)}, {vr(t1)}")
    a("s_nop 1")
    a(f"v_add_f32 {vr(t0)}, {vr(t0)}, {vr(t1)}")
    a(f"v_rcp_f32 {vr(t0)}, {vr(t0)}")
    a("s_nop 0")
    for j in range(4):
        a(f"v_mul_f32 {vr(sc+j)}, {vr(sc+j)}, {vr(t0)}")
    a(f"v_cvt_pk_bf16_f32 {vr(t0)}, {vr(sc)}, {vr(sc+1)}")
    a(f"v_cvt_pk_bf16_f32 {vr(t1)}, {vr(sc+2)}, {vr(sc+3)}")
    a(f"v_cmp_gt_u32 vcc, 32, {vr(vlane)}")
    a(f"v_lshlrev_b32 {vr(t2)}, 2, {vr(vlane)}")
    a("s_nop 0")
    a(f"v_cndmask_b32 {vr(t0)}, {vr(t1)}, {vr(t0)}, vcc")
    a(f"ds_write_b32 {vr(t2)}, {vr(t0)} offset:{PBASE}")


def emit_Vtail(a, W, scr, vVR, vOut, vP4, PBASE, tile_lds_stride, pol_store=""):
    H = W // 2
    NT = max(1, 8 // W)
    pb = scr[0]
    rb = scr[4]
    a(f"ds_read_b32 {vr(pb)}, {vr(vP4)} offset:{PBASE}")
    for k in range(NT):
        for i in range(H):
            a(f"ds_read_b128 {vr(rb+4*(k*H+i),4)}, {vr(vVR[k])} offset:{i*4096}")
    a(f"v_mov_b32 {vr(pb+1)}, 0")
    a(f"v_mov_b32 {vr(pb+3)}, 0")
    for k in range(NT):
        b = rb + 4 * k * H
        n = H
        step = 1
        first = True
        if H == 1:
            a(f"s_waitcnt lgkmcnt({NT-1-k})")
        while step < H:
            for i in range(0, H, 2 * step):
                if first:
                    a(f"s_waitcnt lgkmcnt({(NT-1-k)*H + H - i - 2})")
                for j in (0, 2):
                    a(f"v_pk_add_f32 {vr(b+4*i+j,2)}, {vr(b+4*i+j,2)}, {vr(b+4*(i+step)+j,2)}")
            first = False
            step *= 2
        a("s_nop 1")
        a(f"v_permlane32_swap_b32 {vr(b)}, {vr(b+2)}")
        a(f"v_permlane32_swap_b32 {vr(b+1)}, {vr(b+3)}")
        a("s_nop 1")
        a(f"v_pk_add_f32 {vr(b,2)}, {vr(b,2)}, {vr(b+2,2)}")
        a(f"v_cvt_pk_bf16_f32 {vr(pb+2)}, {vr(b)}, {vr(b+1)}")
        a("s_nop 1")
        a(f"v_mfma_f32_16x16x16_bf16 {vr(b,4)}, {vr(pb+2,2)}, {vr(pb,2)}, 0")
        a("s_nop 7")
        a(f"v_cvt_pk_bf16_f32 {vr(b)}, {vr(b)}, {vr(b+1)}")
        a(f"v_cvt_pk_bf16_f32 {vr(b+1)}, {vr(b+2)}, {vr(b+3)}")
        a(f"buffer_store_dwordx2 {vr(b,2)}, {vr(vOut)}, s[{SRD_O}:{SRD_O+3}], 0 offen offset:{k*32*W} {pol_store}")


def gen_A(W=8, D=4, pol="", interleave=True, polE="", diag=False, rot=0, rep=1, polV=None):
    a = Asm(diag)
    G = 64 // W
    assert G % D == 0
    PBASE, KBASE, VBASE = 0, 256, 256 + W * 4096
    lds = VBASE + W * 4096
    NT = max(1, 8 // W)
    v0 = a.valloc()
    vlane, vOffD, vOffE, vKW, vKR, vOut, vP4, vT = [a.valloc() for _ in range(8)]
    vVR = [a.valloc() for _ in range(NT)]
    vVW = [a.valloc() for _ in range(8)]
    acc = a.valloc(32, 4)
    tmp = a.valloc(8, 4)
    vq = a.valloc(16, 4)
    nscr = max(32, 4 + 4 * NT * (W // 2))
    scr0 = a.valloc(nscr, 4)
    scr = list(range(scr0, scr0 + nscr))
    dat = [a.valloc(32, 4) for _ in range(D)]
    ef = [a.valloc(4, 4) for _ in range(D)]
    gstep = W if interleave else 1

    if polV is None:
        polV = pol
    split = polV != pol

    def loads(s, pol=pol):
        for i in range(8):
            a(f"buffer_load_dwordx4 {vr(dat[s]+4*i,4)}, {vr(vOffD)}, s[{SRD_D}:{SRD_D+3}], s{S_OFFD} offen offset:{i*256} {pol}")
        a(f"buffer_load_dwordx4 {vr(ef[s],4)}, {vr(vOffE)}, s[{SRD_E}:{SRD_E+3}], s{S_OFFE} offen {polE}")
        a(f"s_add_u32 s{S_OFFD}, s{S_OFFD}, {gstep*8192}")
        a(f"s_add_u32 s{S_OFFE}, s{S_OFFE}, {gstep*64}")

    def perms(s, t):
        T = tmp + 4 * (t & 1)
        sel = S_SELHI if t & 1 else S_SELLO
        for p in range(4):
            a(f"v_perm_b32 {vr(T+p)}, {vr(dat[s]+4*(2*p+1)+(t>>1))}, {vr(dat[s]+4*(2*p)+(t>>1))}, s{sel}")

    def compute(s, isK):
        a(f"s_waitcnt vmcnt({9*(D-1)})")
        perms(s, 0)
        for t in range(8):
            if t < 7:
                perms(s, t + 1)
            else:
                a("s_nop 0")
            T = tmp + 4 * (t & 1)
            A, B = (vr(T, 4), vr(ef[s], 4)) if isK else (vr(ef[s], 4), vr(T, 4))
            a(f"v_mfma_f32_16x16x32_bf16 {vr(acc+4*t,4)}, {A}, {B}, {vr(acc+4*t,4)}")

    def start_offsets():
        if interleave:
            a(f"s_lshl_b32 s{S_OFFD}, s{S_W}, 13")
            a(f"s_lshl_b32 s{S_OFFE}, s{S_W}, 6")
        else:
            a(f"s_mul_i32 s{S_OFFD}, s{S_W}, {G*8192}")
            a(f"s_mul_i32 s{S_OFFE}, s{S_W}, {G*64}")

    a("s_cmp_ge_u32 s2, 256")
    a("s_cbranch_scc1 L_end")
    a.stamp(0)
    if rep > 1:
        a("s_mov_b32 s60, 0")
        a("L_rep:")
    a("s_load_dwordx8 s[4:11], s[0:1], 0")
    a("s_load_dwordx4 s[12:15], s[0:1], 32")
    a(f"v_lshrrev_b32 {vr(vT)}, 6, v0")
    a(f"v_and_b32 {vr(vlane)}, 63, v0")
    a(f"v_readfirstlane_b32 s{S_W}, {vr(vT)}")
    a(f"v_lshrrev_b32 {vr(vT)}, 4, {vr(vlane)}")
    a(f"v_and_b32 {vr(vOffD)}, 15, v0")
    a(f"v_lshlrev_b32 {vr(vOffD)}, 4, {vr(vOffD)}")
    a(f"v_lshl_add_u32 {vr(vOffD)}, {vr(vT)}, 11, {vr(vOffD)}")
    a(f"v_and_b32 {vr(vOffE)}, 7, v0")
    a(f"v_lshlrev_b32 {vr(vOffE)}, 12, {vr(vOffE)}")
    a(f"v_lshl_add_u32 {vr(vOffE)}, {vr(vT)}, 4, {vr(vOffE)}")
    start_offsets()
    a(f"s_lshl_b32 s{S_T0}, s2, 19")
    a(f"s_mov_b32 s{SRD_D+2}, 0x80000")
    a(f"s_mov_b32 s{SRD_D+3}, 0x20000")
    a(f"s_mov_b32 s{SRD_E+2}, 0x8000")
    a(f"s_mov_b32 s{SRD_E+3}, 0x20000")
    a("s_waitcnt lgkmcnt(0)")
    a(f"s_add_u32 s{SRD_D}, s{S_K}, s{S_T0}")
    a(f"s_addc_u32 s{SRD_D+1}, s{S_K+1}, 0")
    a(f"s_mov_b32 s{SRD_E}, s{S_E}")
    a(f"s_mov_b32 s{SRD_E+1}, s{S_E+1}")
    loads(0)
    a(f"s_add_u32 s{S_VLO}, s{S_V}, s{S_T0}")
    a(f"s_addc_u32 s{S_VHI}, s{S_V+1}, 0")
    a(f"s_lshl_b32 s{S_T1}, s2, 11")
    a(f"s_add_u32 s{SRD_Q}, s{S_Q}, s{S_T1}")
    a(f"s_addc_u32 s{SRD_Q+1}, s{S_Q+1}, 0")
    a(f"s_mov_b32 s{SRD_Q+2}, 0x800")
    a(f"s_mov_b32 s{SRD_Q+3}, 0x20000")
    a(f"s_add_u32 s{SRD_O}, s{S_O}, s{S_T1}")
    a(f"s_addc_u32 s{SRD_O+1}, s{S_O+1}, 0")
    a(f"s_mov_b32 s{SRD_O+2}, 0x800")
    a(f"s_mov_b32 s{SRD_O+3}, 0x20000")
    a(f"v_and_b32 {vr(vP4)}, 7, v0")
    a(f"v_lshlrev_b32 {vr(vP4)}, 8, {vr(vP4)}")
    a(f"v_lshl_add_u32 {vr(vP4)}, {vr(vT)}, 6, {vr(vP4)}")
    a(f"s_cmp_lg_u32 s{S_W}, 0")
    a("s_cbranch_scc1 L_noq")
    for s in range(4):
        a(f"buffer_load_dwordx4 {vr(vq+4*s,4)}, {vr(vP4)}, s[{SRD_Q}:{SRD_Q+3}], 0 offen offset:{s*16}")
    a("L_noq:")
    for s in range(1, D):
        loads(s)
    a(f"s_mov_b32 s{S_SELLO}, 0x05040100")
    a(f"s_mov_b32 s{S_SELHI}, 0x07060302")
    a(f"s_mov_b32 s{S_SCALE}, 0x3db504f3")
    a(f"s_mov_b32 s{S_LOG2E}, 0x3fb8aa3b")
    for x in range(32):
        a(f"v_mov_b32 {vr(acc+x)}, 0")
    a(f"v_and_b32 {vr(vKR)}, 7, v0")
    a(f"v_lshl_add_u32 {vr(vKR)}, {vr(vT)}, 3, {vr(vKR)}")
    a(f"v_lshlrev_b32 {vr(vKR)}, 4, {vr(vKR)}")
    a(f"v_add_u32 {vr(vKR)}, {KBASE}, {vr(vKR)}")
    a(f"s_lshl_b32 s{S_T0}, s{S_W}, 12")
    a(f"v_add_u32 {vr(vKW)}, s{S_T0}, {vr(vKR)}")
    a(f"v_bfe_u32 {vr(vOut)}, v0, 3, 1")
    a(f"v_mul_u32_u24 {vr(vOut)}, {(W//2)*4096}, {vr(vOut)}")
    a(f"v_add_u32 {vr(vKR)}, {vr(vKR)}, {vr(vOut)}")
    a(f"v_and_b32 {vr(vOut)}, 1, {vr(vT)}")
    a(f"v_lshlrev_b32 {vr(vOut)}, 8, {vr(vOut)}")
    a(f"s_add_u32 s{S_T1}, s{S_T0}, {VBASE}")
    a(f"v_add_u32 {vr(vP4)}, s{S_T1}, {vr(vOut)}")
    for t in range(8):
        a(f"v_add_u32 {vr(vVW[t])}, {2*t}, v0")
        a(f"v_and_b32 {vr(vVW[t])}, 15, {vr(vVW[t])}")
        a(f"v_lshl_add_u32 {vr(vVW[t])}, {vr(vVW[t])}, 4, {vr(vP4)}")
    a(f"v_lshrrev_b32 {vr(vP4)}, 1, {vr(vT)}")
    a(f"v_mul_u32_u24 {vr(vP4)}, {(W//2)*4096}, {vr(vP4)}")
    a(f"v_add3_u32 {vr(vP4)}, {vr(vP4)}, {vr(vOut)}, {vr(vOut)}")
    a(f"v_sub_u32 {vr(vP4)}, {vr(vP4)}, {vr(vOut)}")
    a(f"v_and_b32 {vr(vOut)}, 7, v0")
    a(f"v_lshl_add_u32 {vr(vP4)}, {vr(vOut)}, 9, {vr(vP4)}")
    a(f"v_add_u32 {vr(vP4)}, {VBASE}, {vr(vP4)}")
    a(f"v_lshlrev_b32 {vr(vOut)}, 1, {vr(vOut)}")
    a(f"v_bfe_u32 {vr(tmp)}, v0, 3, 1")
    a(f"v_add_u32 {vr(vOut)}, {vr(vOut)}, {vr(tmp)}")
    a(f"s_lshl_b32 s{S_T1}, s{S_W}, 1")
    for k in range(NT):
        a(f"v_add_u32 {vr(tmp)}, s{S_T1}, {vr(vOut)}")
        if k:
            a(f"v_add_u32 {vr(tmp)}, {2*k*W}, {vr(tmp)}")
        a(f"v_and_b32 {vr(tmp)}, 15, {vr(tmp)}")
        a(f"v_lshl_add_u32 {vr(vVR[k])}, {vr(tmp)}, 4, {vr(vP4)}")
    a(f"v_and_b32 {vr(vOut)}, 15, v0")
    a(f"v_lshlrev_b32 {vr(vOut)}, 8, {vr(vOut)}")
    a(f"v_lshl_add_u32 {vr(vOut)}, {vr(vT)}, 3, {vr(vOut)}")
    a(f"s_lshl_b32 s{S_T1}, s{S_W}, 5")
    a(f"v_add_u32 {vr(vOut)}, s{S_T1}, {vr(vOut)}")
    a(f"v_lshlrev_b32 {vr(vP4)}, 2, {vr(vlane)}")

    a.stamp(1)
    if diag:
        a(f"s_waitcnt vmcnt({9*(D-1)})")
    a.stamp(2)
    a(f"s_mov_b32 s{S_IT}, 0")
    def switch_to_v():
        a(f"s_mov_b32 s{SRD_D}, s{S_VLO}")
        a(f"s_mov_b32 s{SRD_D+1}, s{S_VHI}")
        a(f"s_mov_b32 s{SRD_E}, s{S_F}")
        a(f"s_mov_b32 s{SRD_E+1}, s{S_F+1}")
        start_offsets()
    a("L_k:")
    if not split:
        a(f"s_cmp_lg_u32 s{S_IT}, {G-D}")
        a("s_cbranch_scc1 L_k_go")
        switch_to_v()
        a("L_k_go:")
    for s in range(D):
        compute(s, True)
        loads(s)
    a(f"s_add_u32 s{S_IT}, s{S_IT}, {D}")
    a(f"s_cmp_lt_u32 s{S_IT}, {G-D if split else G}")
    a("s_cbranch_scc1 L_k")
    if split:
        switch_to_v()
        for s in range(D):
            compute(s, True)
            loads(s, polV)
    a.stamp(3)
    a(f"s_mov_b32 exec_lo, 0x00ff00ff")
    a(f"s_mov_b32 exec_hi, 0x00ff00ff")
    for t in range(8):
        a(f"ds_write_b128 {vr(vKW)}, {vr(acc+4*t,4)} offset:{t*512}")
    a("s_mov_b64 exec, -1")
    a("s_waitcnt lgkmcnt(0)")
    a("s_barrier")
    a(f"s_cmp_lg_u32 s{S_W}, 0")
    a("s_cbranch_scc1 L_nop")
    emit_P(a, W, acc, scr, vq, vKR, vlane, PBASE, lambda s, p: (4 * (2 * p) + s, 4 * (2 * p + 1) + s))
    a("L_nop:")
    for x in range(32):
        a(f"v_mov_b32 {vr(acc+x)}, 0")
    a(f"s_mov_b32 s{S_IT}, 0")
    a("L_v:")
    a(f"s_cmp_lg_u32 s{S_IT}, {G-D}")
    a("s_cbranch_scc1 L_v_go")
    a(f"s_mov_b32 s{SRD_D+2}, 0")
    a(f"s_mov_b32 s{SRD_E+2}, 0")
    a("L_v_go:")
    for s in range(D):
        compute(s, False)
        loads(s, polV)
    a(f"s_add_u32 s{S_IT}, s{S_IT}, {D}")
    a(f"s_cmp_lt_u32 s{S_IT}, {G}")
    a("s_cbranch_scc1 L_v")
    a.stamp(4)
    a("s_mov_b32 exec_hi, 0")
    for t in range(8):
        a(f"ds_write_b128 {vr(vVW[t])}, {vr(acc+4*t,4)} offset:{t*512}")
    a("s_mov_b64 exec, -1")
    a("s_waitcnt lgkmcnt(0)")
    a("s_barrier")
    if W > 8:
        a(f"s_cmp_ge_u32 s{S_W}, 8")
        a("s_cbranch_scc1 L_end")
    a.stamp(5)
    emit_Vtail(a, W, scr, vVR, vOut, vP4, PBASE, 0)
    if rep > 1:
        a("s_waitcnt vmcnt(0) lgkmcnt(0)")
        a("s_barrier")
        a("s_add_u32 s60, s60, 1")
        a(f"s_cmp_lt_u32 s60, {rep}")
        a("s_cbranch_scc1 L_rep")
    a.stamp(6)
    a.stamp_out(W, tmp)
    a("L_end:")
    a("s_endpgm")
    return wrap(a, W, lds)


if __name__ == "__main__":
    ap = argparse.ArgumentParser()
    ap.add_argument("--mode", default="A")
    ap.add_argument("-W", type=int, default=8)
    ap.add_argument("-D", type=int, default=4)
    ap.add_argument("--pol", default="")
    ap.add_argument("--polE", default="")
    ap.add_argument("--blocked", action="store_true")
    ap.add_argument("--diag", type=int, default=0)
    ap.add_argument("--rot", type=int, default=0)
    ap.add_argument("--rep", type=int, default=1)
    ap.add_argument("--polV", default=None)
    ap.add_argument("-o", default="-")
    x = ap.parse_args()
    s = gen_A(x.W, x.D, x.pol, not x.blocked, x.polE, x.diag, x.rot, x.rep, x.polV)
    if x.o == "-":
        sys.stdout.write(s)
    else:
        open(x.o, "w").write(s)
```
